```python
import torch

def _softmax(x, axis=-1):
    return torch.softmax(x, dim=axis)
def _gelu(x):
    return torch.nn.functional.gelu(x, approximate="tanh")
def _silu(x):
    return torch.nn.functional.silu(x)
def _sigmoid(x):
    return torch.sigmoid(x)
def _layernorm(x, axis=-1, eps=1e-5):
    m = x.mean(dim=axis, keepdim=True)
    v = x.var(dim=axis, keepdim=True, unbiased=False)
    return (x - m) / torch.sqrt(v + eps)
def _scatter_add(tgt, idx, src, axis=0):
    return tgt.clone().index_add_(axis, idx, src)
def _segment_sum(src, seg, n):
    out = torch.zeros((n,) + src.shape[1:], dtype=src.dtype)
    return out.index_add_(0, seg, src)
def _pad(x, pw):
    flat = tuple(v for pair in reversed(pw) for v in pair)
    return torch.nn.functional.pad(x, flat)

kernel_name = 'recurrent_scan__ssm_conv_s5__geglu_ffn__prompt'

def setup_inputs():

    _w = (lambda a: (lambda t: t.to(torch.bfloat16) if t.is_floating_point() else t)(torch.as_tensor(a)))
    def _A_setup():
        B, S, D = 1, 2048, 1024
        P = D
        Lambda_re = -0.5 * (lambda _x: torch.exp(torch.as_tensor(_x)))((lambda *s: torch.randn(*s, dtype=torch.bfloat16) * 0.2)(P))
        Lambda_im = (lambda *s: torch.randn(*s, dtype=torch.bfloat16) * 0.4)(P) * 1.0
        B_re = (lambda *s: torch.randn(*s, dtype=torch.bfloat16) * 0.2)(P, D) * (D ** -0.5)
        B_im = (lambda *s: torch.randn(*s, dtype=torch.bfloat16) * 0.2)(P, D) * (D ** -0.5)
        C_re = (lambda *s: torch.randn(*s, dtype=torch.bfloat16) * 0.2)(D, P) * (P ** -0.5)
        C_im = (lambda *s: torch.randn(*s, dtype=torch.bfloat16) * 0.2)(D, P) * (P ** -0.5)
        log_dt = (lambda *s: torch.randn(*s, dtype=torch.bfloat16) * 0.2)(P) * 0.3 - 2.0
        Dskip = (lambda *s: torch.randn(*s, dtype=torch.bfloat16) * 0.05)(D)
        return {
            "x": _w((lambda *s: torch.randn(*s, dtype=torch.bfloat16) * 0.05)(B, S, D)),
            "Lambda_re": _w(Lambda_re),
            "Lambda_im": _w(Lambda_im),
            "B_re": _w(B_re),
            "B_im": _w(B_im),
            "C_re": _w(C_re),
            "C_im": _w(C_im),
            "log_dt": _w(log_dt),
            "Dskip": _w(Dskip),
        }
    _A_in = _A_setup()

    def _B_setup():
        B, S, D, F = 1, 2048, 1024, 3584
        return {
            "x": _w((lambda *s: torch.randn(*s, dtype=torch.bfloat16) * 0.05)(B, S, D)),
            "w_gate": _w((lambda *s: torch.randn(*s, dtype=torch.bfloat16) * 0.05)(D, F)),
            "w_up": _w((lambda *s: torch.randn(*s, dtype=torch.bfloat16) * 0.05)(D, F)),
            "w_down": _w((lambda *s: torch.randn(*s, dtype=torch.bfloat16) * 0.05)(F, D)),
        }
    _B_in = _B_setup()

    return {
        "A_x": _A_in["x"],
        "A_Lambda_re": _A_in["Lambda_re"],
        "A_Lambda_im": _A_in["Lambda_im"],
        "A_B_re": _A_in["B_re"],
        "A_B_im": _A_in["B_im"],
        "A_C_re": _A_in["C_re"],
        "A_C_im": _A_in["C_im"],
        "A_log_dt": _A_in["log_dt"],
        "A_Dskip": _A_in["Dskip"],
        "B_x": _B_in["x"],
        "B_w_gate": _B_in["w_gate"],
        "B_w_up": _B_in["w_up"],
        "B_w_down": _B_in["w_down"],
    }

def reference(A_x, A_Lambda_re, A_Lambda_im, A_B_re, A_B_im, A_C_re, A_C_im, A_log_dt, A_Dskip, B_x, B_w_gate, B_w_up, B_w_down):
    def _A_ref(x, Lambda_re, Lambda_im, B_re, B_im, C_re, C_im, log_dt, Dskip):
        Bsz, L, H = x.shape
        Lam = Lambda_re + 1j * Lambda_im
        Bmat = B_re + 1j * B_im
        Cmat = C_re + 1j * C_im
        dt = torch.exp(log_dt)
        Lam_bar = torch.exp(dt * Lam)
        B_bar = ((Lam_bar - 1.0) / Lam)[:, None] * Bmat
        Bu = torch.einsum("bld,pd->blp", x + 0j, B_bar)
        h = torch.zeros_like(Bu[:, 0, :])
        hs = []
        for t in range(L):
            h = Lam_bar[None, :] * h + Bu[:, t, :]
            hs.append(h)
        hseq = torch.stack(hs, 1)
        y = 2.0 * torch.einsum("blp,dp->bld", hseq, Cmat).real + x * Dskip[None, None, :]
        return y

    def _B_ref(x, w_gate, w_up, w_down):
        return (_gelu(x @ w_gate) * (x @ w_up)) @ w_down

    x = A_x
    xn = _layernorm(x, axis=-1)
    s = _A_ref(xn, A_Lambda_re, A_Lambda_im, A_B_re, A_B_im, A_C_re, A_C_im, A_log_dt, A_Dskip)
    g = _silu(_B_ref(xn, B_w_gate, B_w_up, B_w_down))
    return x + s * g
```

```python
class Asm:
    def __init__(self):
        self.lines = []
        self.label_n = 0
    def __call__(self, s):
        self.lines.append("    " + s)
    def raw(self, s):
        self.lines.append(s)
    def label(self, name):
        self.lines.append(name + ":")
    _gl = [0]
    def newlabel(self, base="L"):
        Asm._gl[0] += 1
        return f"{base}_{Asm._gl[0]}"
    def comment(self, s):
        self.lines.append("    ; " + s)
    def text(self):
        return "\n".join(self.lines) + "\n"

def vr(b, n=1):
    return f"v{b}" if n == 1 else f"v[{b}:{b+n-1}]"
def sr(b, n=1):
    return f"s{b}" if n == 1 else f"s[{b}:{b+n-1}]"
def ar(b, n=1):
    return f"a{b}" if n == 1 else f"a[{b}:{b+n-1}]"

def kernel_header(name):
    return f""".globl {name}
.p2align 8
.type {name},@function
{name}:
"""

def kernel_desc(name, vgpr, sgpr=102, accum=None):
    if accum is None:
        accum = ((vgpr + 3)//4)*4
    return f""".amdhsa_kernel {name}
  .amdhsa_next_free_vgpr {vgpr}
  .amdhsa_next_free_sgpr {sgpr}
  .amdhsa_accum_offset {accum}
  .amdhsa_group_segment_fixed_size 0
  .amdhsa_kernarg_size 128
  .amdhsa_user_sgpr_count 2
  .amdhsa_user_sgpr_kernarg_segment_ptr 1
  .amdhsa_system_sgpr_workgroup_id_x 1
.end_amdhsa_kernel
"""

def make_srd(a, d, base, nbytes):
    a(f"s_mov_b32 s{d}, s{base}")
    a(f"s_mov_b32 s{d+1}, s{base+1}")
    a(f"s_mov_b32 s{d+2}, {nbytes}")
    a(f"s_mov_b32 s{d+3}, 0x00020000")
```

```python
from asmlib import *

class Opnd:
    def __init__(self, name, kind, ext, rs, srd, lds_off):
        self.name, self.kind, self.ext, self.rs, self.srd, self.lds_off = name, kind, ext, rs, srd, lds_off
        self.bytes = ext*128
        self.vdma = None
        self.vrd = None
    def nblocks(self):
        return self.bytes // 1024

class Gemm:
    def __init__(self, a, NW, S, stage_bytes, vbase):
        self.a = a; self.NW = NW; self.S = S; self.stage_bytes = stage_bytes
        self.vn = vbase
        self.shift_regs = []
        self.cur_stage = 0
    def valloc(self, n=1, align=1):
        self.vn = (self.vn + align-1)//align*align
        r = self.vn; self.vn += n
        return r
    def setup_dma(self, op, v_lane, s_wave, tmp):
        a = self.a
        op.vdma = self.valloc()
        t0, t1, t2 = tmp
        if op.kind == 'MK':
            a(f"v_lshrrev_b32 v{t0}, 3, v{v_lane}")
            a(f"v_and_b32 v{t1}, 7, v{v_lane}")
            a(f"v_lshrrev_b32 v{t2}, 1, v{t0}")
            a(f"s_and_b32 s90, s{s_wave}, 1")
            a(f"s_lshl_b32 s90, s90, 2")
            a(f"v_add_u32 v{t2}, s90, v{t2}")
            a(f"v_xor_b32 v{t1}, v{t1}, v{t2}")
            a(f"v_lshlrev_b32 v{t1}, 4, v{t1}")
            a(f"s_lshl_b32 s90, s{s_wave}, 3")
            a(f"v_add_u32 v{t0}, s90, v{t0}")
            a(f"s_mov_b32 s90, {op.rs}")
            a(f"v_mul_lo_u32 v{t0}, v{t0}, s90")
            a(f"v_add_u32 v{op.vdma}, v{t0}, v{t1}")
        else:
            C = op.ext; cpr = C//8; KB = 1024//(2*C)
            sh = cpr.bit_length()-1
            a(f"v_lshrrev_b32 v{t0}, {sh}, v{v_lane}")
            a(f"v_and_b32 v{t1}, {cpr-1}, v{v_lane}")
            if C == 128:
                a(f"v_and_b32 v{t2}, 3, v{t0}")
                a(f"v_lshlrev_b32 v{t2}, 2, v{t2}")
            elif C == 64:
                a(f"v_lshrrev_b32 v{t2}, 1, v{t0}")
                a(f"v_and_b32 v{t2}, 1, v{t2}")
                a(f"v_lshlrev_b32 v{t2}, 2, v{t2}")
            else:
                raise ValueError
            a(f"v_xor_b32 v{t1}, v{t1}, v{t2}")
            a(f"v_lshlrev_b32 v{t1}, 4, v{t1}")
            a(f"s_mul_i32 s90, s{s_wave}, {KB}")
            a(f"v_add_u32 v{t0}, s90, v{t0}")
            a(f"s_mov_b32 s90, {op.rs}")
            a(f"v_mul_lo_u32 v{t0}, v{t0}, s90")
            a(f"v_add_u32 v{op.vdma}, v{t0}, v{t1}")
    def setup_read(self, op, v_lane, base_expr_sgpr, ntiles, tmp):
        a = self.a
        t0, t1, t2 = tmp
        op.ntiles = ntiles
        if op.kind == 'MK':
            op.vrd = [self.valloc() for _ in range(4)]
            a(f"v_and_b32 v{t0}, 31, v{v_lane}")
            a(f"v_lshrrev_b32 v{t1}, 5, v{v_lane}")
            a(f"v_lshrrev_b32 v{t2}, 1, v{t0}")
            a(f"v_and_b32 v{t2}, 7, v{t2}")
            a(f"v_add_u32 v{t0}, s{base_expr_sgpr}, v{t0}")
            a(f"v_lshlrev_b32 v{t0}, 7, v{t0}")
            for kk in range(4):
                r = op.vrd[kk]
                a(f"v_add_u32 v{r}, {2*kk}, v{t1}")
                a(f"v_xor_b32 v{r}, v{r}, v{t2}")
                a(f"v_lshlrev_b32 v{r}, 4, v{r}")
                a(f"v_add_u32 v{r}, v{r}, v{t0}")
                if op.lds_off:
                    a(f"v_add_u32 v{r}, {op.lds_off}, v{r}")
        else:
            C = op.ext; RB = 2*C
            op.vrd = [self.valloc() for _ in range(ntiles)]
            a(f"v_and_b32 v{t0}, 15, v{v_lane}")
            a(f"v_lshrrev_b32 v{t1}, 2, v{t0}")
            a(f"v_and_b32 v{t0}, 3, v{t0}")
            a(f"v_lshlrev_b32 v{t0}, 3, v{t0}")
            a(f"v_lshrrev_b32 v{t2}, 4, v{v_lane}")
            a(f"v_and_b32 v{t2}, 1, v{t2}")
            a(f"v_lshl_add_u32 v{t0}, v{t2}, 5, v{t0}")
            for nt in range(ntiles):
                r = op.vrd[nt]
                a(f"s_lshl_b32 s90, s{base_expr_sgpr}, 1")
                a(f"s_add_u32 s90, s90, {nt*64}")
                a(f"v_add_u32 v{r}, s90, v{t0}")
                if C == 128:
                    a(f"v_lshlrev_b32 v{t2}, 6, v{t1}")
                else:
                    a(f"v_lshrrev_b32 v{t2}, 1, v{t1}")
                    a(f"v_lshlrev_b32 v{t2}, 6, v{t2}")
                a(f"v_xor_b32 v{r}, v{r}, v{t2}")
                a(f"v_lshrrev_b32 v{t2}, 5, v{v_lane}")
                a(f"v_lshl_add_u32 v{t2}, v{t2}, 3, v{t1}")
                a(f"v_lshlrev_b32 v{t2}, {RB.bit_length()-1}, v{t2}")
                a(f"v_add_u32 v{r}, v{r}, v{t2}")
                if op.lds_off:
                    a(f"v_add_u32 v{r}, {op.lds_off}, v{r}")
        self.shift_regs += op.vrd
    def emit_dma(self, ops, buf, s_wave1k, soff):
        a = self.a
        n = 0
        for op in ops:
            nb = op.nblocks() // self.NW
            for j in range(nb):
                ldsb = buf*self.stage_bytes + op.lds_off + j*self.NW*1024
                a(f"s_add_u32 m0, s{s_wave1k}, {ldsb}")
                if op.kind == 'MK':
                    joff = j*self.NW*8*op.rs
                else:
                    KB = 1024//(2*op.ext)
                    joff = j*self.NW*KB*op.rs
                if joff:
                    a(f"s_add_u32 s91, s{soff[op.name]}, {joff}")
                    so = "s91"
                else:
                    so = f"s{soff[op.name]}"
                    a("s_nop 0")
                a(f"buffer_load_dwordx4 v{op.vdma}, {sr(op.srd,4)}, {so} offen lds")
                n += 1
        return n
    def goto_stage(self, buf):
        a = self.a
        d = (buf - self.cur_stage)*self.stage_bytes
        if d:
            for r in self.shift_regs:
                if d > 0:
                    a(f"v_add_u32 v{r}, {d}, v{r}")
                else:
                    a(f"v_subrev_u32 v{r}, {-d}, v{r}")
        self.cur_stage = buf
    def read_frags(self, opA, mtiles, Bparts, kk, fr):
        a = self.a; n = 0
        for mt in range(mtiles):
            n += self._read(opA, mt, kk, fr['A'][mt])
        for pi, op in enumerate(Bparts):
            for nt in range(op.ntiles):
                n += self._read(op, nt, kk, fr['B'][pi][nt])
        return n
    def _read(self, op, t, kk, dst):
        a = self.a
        if op.kind == 'MK':
            a(f"ds_read_b128 {vr(dst,4)}, v{op.vrd[kk]} offset:{t*4096}")
            return 1
        else:
            RB = 2*op.ext
            a(f"ds_read_b64_tr_b16 {vr(dst,2)}, v{op.vrd[t]} offset:{kk*16*RB}")
            a(f"ds_read_b64_tr_b16 {vr(dst+2,2)}, v{op.vrd[t]} offset:{kk*16*RB + 4*RB}")
            return 2

class Seg:
    def __init__(self, A, B, n, acc, kadv):
        self.A, self.B, self.n, self.acc, self.kadv = A, B, n, acc, kadv
        self.ops = [A] + B

def kloop(g, segs, mtiles, soff, s_wave1k):
    a = g.a; S = g.S
    maxB = max(len(s.B) for s in segs)
    maxnt = max(op.ntiles for s in segs for op in s.B)
    frs = []
    for _ in range(2):
        fr = {'A': [g.valloc(4, 4) for _ in range(mtiles)],
              'B': [[g.valloc(4, 4) for _ in range(maxnt)] for _ in range(maxB)]}
        frs.append(fr)
    steps = [(si, i) for si, s in enumerate(segs) for i in range(s.n)]
    N = len(steps)
    D = None
    def dma(gstep):
        nonlocal D
        si, i = steps[gstep]
        s = segs[si]
        n = g.emit_dma(s.ops, gstep % S, s_wave1k, soff)
        for op in s.ops:
            a(f"s_add_u32 s{soff[op.name]}, s{soff[op.name]}, {s.kadv[op.name]}")
        if D is None: D = n
        assert D == n
    def compute(gstep, do_dma):
        si, i = steps[gstep]
        s = segs[si]
        out = min(gstep+S-2, N-1) - gstep
        a(f"s_waitcnt vmcnt({out*D})")
        a("s_barrier")
        g.goto_stage(gstep % S)
        g.read_frags(s.A, mtiles, s.B, 0, frs[0])
        if do_dma:
            dma(gstep+S-1)
        for kk in range(4):
            nn = 0
            if kk < 3:
                nn = g.read_frags(s.A, mtiles, s.B, kk+1, frs[(kk+1) % 2])
            a(f"s_waitcnt lgkmcnt({nn})")
            fr = frs[kk % 2]
            for pi, op in enumerate(s.B):
                for mt in range(mtiles):
                    for nt in range(op.ntiles):
                        c = s.acc(pi, mt, nt)
                        a(f"v_mfma_f32_32x32x16_bf16 {vr(c,16)}, {vr(fr['A'][mt],4)}, {vr(fr['B'][pi][nt],4)}, {vr(c,16)}")
    for st in range(min(S-1, N)):
        dma(st)
    gs = 0
    for si, s in enumerate(segs):
        steady = s.n - (S-1)
        iters = max(steady, 0)//S
        if iters >= 2:
            lab = a.newlabel("L_k")
            a(f"s_mov_b32 s92, {iters}")
            g.goto_stage(gs % S)
            a.label(lab)
            for u in range(S):
                compute(gs+u, True)
            g.goto_stage(gs % S)
            a("s_sub_u32 s92, s92, 1")
            a("s_cmp_lg_u32 s92, 0")
            a(f"s_cbranch_scc1 {lab}")
            done = iters*S
        else:
            done = 0
        for i in range(done, s.n):
            compute(gs+i, gs+i+S-1 < N)
        gs += s.n
    g.goto_stage(0)
```

```python
from asmlib import *
from gemmlib import *
from k_ln import *

def gen_bu():
    a = Asm()
    name = "bu_kernel"
    a.raw(kernel_header(name))
    a("s_cmp_ge_u32 s2, 256")
    a("s_cbranch_scc1 L_bu_done")
    a("s_load_dwordx2 s[4:5], s[0:1], 24")
    a("s_load_dwordx2 s[6:7], s[0:1], 32")
    a("s_load_dwordx2 s[28:29], s[0:1], 120")
    a("s_waitcnt lgkmcnt(0)")
    make_srd(a, 8, 28, 2048*2048)
    make_srd(a, 12, 4, 1024*2048)
    make_srd(a, 16, 6, 1024*2048)
    a(f"s_add_u32 s36, s28, {WS_PAR}")
    a("s_addc_u32 s37, s29, 0")
    make_srd(a, 40, 36, 16384)
    a(f"s_add_u32 s28, s28, {WS_BU}")
    a("s_addc_u32 s29, s29, 0")
    make_srd(a, 20, 28, 2048*1024*8)
    a("v_lshrrev_b32 v1, 6, v0")
    a("s_nop 0")
    a("v_readfirstlane_b32 s3, v1")
    a("v_and_b32 v1, 63, v0")
    a("s_lshl_b32 s4, s3, 10")
    a("s_and_b32 s30, s2, 15")
    a("s_lshr_b32 s31, s2, 4")
    a("s_mul_i32 s24, s30, 128*2048")
    a("s_mul_i32 s25, s31, 64*2048")
    a("s_mov_b32 s26, s25")
    a("s_and_b32 s32, s3, 1")
    a("s_lshl_b32 s32, s32, 6")
    a("s_lshr_b32 s33, s3, 1")
    a("s_lshl_b32 s33, s33, 5")
    g = Gemm(a, 4, 4, 32768, 8)
    A  = Opnd('A', 'MK', 128, 2048, 8, 0)
    Br = Opnd('R', 'MK', 64, 2048, 12, 16384)
    Bi = Opnd('I', 'MK', 64, 2048, 16, 24576)
    tmp = (2, 3, 4)
    for op in (A, Br, Bi):
        g.setup_dma(op, 1, 3, tmp)
    g.setup_read(A, 1, 32, 2, tmp)
    g.setup_read(Br, 1, 33, 1, tmp)
    g.setup_read(Bi, 1, 33, 1, tmp)
    acc0 = g.valloc(64, 4)
    def acc(pi, mt, nt): return acc0 + (pi*2 + mt)*16
    for i in range(64):
        a(f"v_mov_b32 v{acc0+i}, 0")
    seg = Seg(A, [Br, Bi], 16, acc, {'A': 128, 'R': 128, 'I': 128})
    kloop(g, [seg], 2, {'A': 24, 'R': 25, 'I': 26}, 4)
    t = g.vn
    vp = t; vadr = t+1; vc = t+2
    vT = t+6
    a(f"v_and_b32 v{vp}, 31, v1")
    a(f"v_add_u32 v{vp}, s33, v{vp}")
    a("s_lshl_b32 s34, s31, 6")
    a(f"v_add_u32 v{vp}, s34, v{vp}")
    a(f"v_lshlrev_b32 v{vadr}, 4, v{vp}")
    a(f"buffer_load_dwordx4 {vr(vc,4)}, v{vadr}, s[40:43], 0 offen")
    a(f"v_lshrrev_b32 v{vadr}, 5, v1")
    a(f"v_lshlrev_b32 v{vadr}, 2, v{vadr}")
    a(f"v_add_u32 v{vadr}, s32, v{vadr}")
    a("s_lshl_b32 s34, s30, 7")
    a(f"v_add_u32 v{vadr}, s34, v{vadr}")
    a(f"v_lshlrev_b32 v{vadr}, 10, v{vadr}")
    a(f"v_add_u32 v{vadr}, v{vadr}, v{vp}")
    a(f"v_lshlrev_b32 v{vadr}, 3, v{vadr}")
    a("s_nop 15")
    a("s_waitcnt vmcnt(0)")
    cr, ci = vc+2, vc+3
    for mt in range(2):
        for r in range(16):
            ur = acc(0, mt, 0)+r; ui = acc(1, mt, 0)+r
            row = mt*32 + 8*(r//4) + (r % 4)
            a(f"v_mul_f32 v{vT}, v{cr}, v{ur}")
            a(f"v_fma_f32 v{vT}, -v{ci}, v{ui}, v{vT}")
            a(f"v_mul_f32 v{vT+1}, v{cr}, v{ui}")
            a(f"v_fma_f32 v{vT+1}, v{ci}, v{ur}, v{vT+1}")
            a(f"s_mov_b32 s35, {row*8192}")
            a(f"buffer_store_dwordx2 {vr(vT,2)}, v{vadr}, s[20:23], s35 offen")
            vT = t+6 + ((vT - (t+6) + 2) % 8)
    a("s_waitcnt vmcnt(0)")
    a.label("L_bu_done")
    a("s_endpgm")
    return a.text(), kernel_desc(name, t+16, 96)
```

```python
from asmlib import *
from gemmlib import *
from k_ln import *

def gen_ffn1():
    a = Asm()
    name = "ffn1_kernel"
    a.raw(kernel_header(name))
    a("s_cmp_ge_u32 s2, 224")
    a("s_cbranch_scc1 L_ffn1_done")
    a("s_load_dwordx2 s[4:5], s[0:1], 80")
    a("s_load_dwordx2 s[6:7], s[0:1], 88")
    a("s_load_dwordx2 s[28:29], s[0:1], 120")
    a("s_waitcnt lgkmcnt(0)")
    make_srd(a, 8, 28, 2048*2048)
    make_srd(a, 12, 4, 1024*7168)
    make_srd(a, 16, 6, 1024*7168)
    a(f"s_add_u32 s28, s28, {WS_HM}")
    a("s_addc_u32 s29, s29, 0")
    make_srd(a, 20, 28, 2048*7168)
    a("v_lshrrev_b32 v1, 6, v0")
    a("s_nop 0")
    a("v_readfirstlane_b32 s3, v1")
    a("v_and_b32 v1, 63, v0")
    a("s_lshl_b32 s4, s3, 10")
    a("s_and_b32 s30, s2, 7")
    a("s_lshr_b32 s31, s2, 3")
    a("s_mul_i32 s24, s30, 256*2048")
    a("s_lshl_b32 s25, s31, 8")
    a("s_mov_b32 s26, s25")
    a("s_and_b32 s32, s3, 3")
    a("s_lshl_b32 s32, s32, 6")
    a("s_lshr_b32 s33, s3, 2")
    a("s_lshl_b32 s33, s33, 6")
    g = Gemm(a, 8, 2, 65536, 8)
    A  = Opnd('A', 'MK', 256, 2048, 8, 0)
    Bg = Opnd('G', 'KN', 128, 7168, 12, 32768)
    Bu = Opnd('U', 'KN', 128, 7168, 16, 49152)
    tmp = (2, 3, 4)
    for op in (A, Bg, Bu):
        g.setup_dma(op, 1, 3, tmp)
    g.setup_read(A, 1, 32, 2, tmp)
    g.setup_read(Bg, 1, 33, 2, tmp)
    g.setup_read(Bu, 1, 33, 2, tmp)
    acc0 = g.valloc(128, 4)
    def acc(pi, mt, nt): return acc0 + ((pi*2 + mt)*2 + nt)*16
    for i in range(128):
        a(f"v_mov_b32 v{acc0+i}, 0")
    seg = Seg(A, [Bg, Bu], 16, acc, {'A': 128, 'G': 64*7168, 'U': 64*7168})
    kloop(g, [seg], 2, {'A': 24, 'G': 25, 'U': 26}, 4)
    a("s_nop 15")
    a("s_barrier")
    t = g.vn
    vrow = t; vx = t+1; vy = t+2; vz = t+3; ve = t+4
    a(f"v_lshrrev_b32 v{vrow}, 5, v1")
    a(f"v_lshlrev_b32 v{vrow}, 2, v{vrow}")
    a(f"v_add_u32 v{vrow}, s32, v{vrow}")
    a(f"v_lshlrev_b32 v{vrow}, 8, v{vrow}")
    a(f"v_and_b32 v{vx}, 31, v1")
    a(f"v_add_u32 v{vx}, s33, v{vx}")
    a(f"v_lshl_add_u32 v{vrow}, v{vx}, 1, v{vrow}")
    for mt in range(2):
        for nt in range(2):
            for r in range(16):
                ga = acc(0, mt, nt) + r; ua = acc(1, mt, nt) + r
                row = mt*32 + 8*(r//4) + (r % 4)
                off = row*256 + nt*64
                a(f"v_cvt_pk_bf16_f32 v{vx}, v{ga}, v{ua}")
                a(f"v_and_b32 v{vy}, 0xffff0000, v{vx}")
                a(f"v_lshlrev_b32 v{vx}, 16, v{vx}")
                a(f"v_mul_f32 v{vz}, v{vx}, v{vx}")
                a(f"v_fma_f32 v{vz}, v{vz}, s93, 1.0") if False else a(f"v_fmaak_f32 v{vz}, v{vz}, 0x3d372713, 1.0".replace("v_fmaak_f32", "v_fmaak_f32")) if False else None
                a(f"v_mov_b32 v{ve}, 1.0")
                a(f"v_fmac_f32 v{ve}, 0x3d372713, v{vz}")
                a(f"v_mul_f32 v{ve}, v{ve}, v{vx}")
                a(f"v_mul_f32 v{ve}, 0xc0135761, v{ve}")
                a(f"v_exp_f32 v{ve}, v{ve}")
                a("s_nop 0")
                a(f"v_add_f32 v{ve}, 1.0, v{ve}")
                a(f"v_rcp_f32 v{ve}, v{ve}")
                a("s_nop 0")
                a(f"v_mul_f32 v{ve}, v{ve}, v{vx}")
                a(f"v_cvt_pk_bf16_f32 v{ve}, v{ve}, v{ve}")
                a(f"v_lshlrev_b32 v{ve}, 16, v{ve}")
                a(f"v_mul_f32 v{ve}, v{ve}, v{vy}")
                a(f"v_cvt_pk_bf16_f32 v{ve}, v{ve}, v{ve}")
                a(f"ds_write_b16 v{vrow}, v{ve} offset:{off}")
    a("s_waitcnt lgkmcnt(0)")
    a("s_barrier")
    a(f"v_lshrrev_b32 v{vx}, 4, v0")
    a(f"v_and_b32 v{vy}, 15, v0")
    a(f"v_lshlrev_b32 v{vz}, 8, v{vx}")
    a(f"v_lshl_add_u32 v{vz}, v{vy}, 4, v{vz}")
    a("s_lshl_b32 s34, s30, 8")
    a(f"v_add_u32 v{vx}, s34, v{vx}")
    a("s_mov_b32 s35, 7168")
    a(f"v_mul_lo_u32 v{vx}, v{vx}, s35")
    a(f"v_lshl_add_u32 v{vx}, v{vy}, 4, v{vx}")
    a("s_lshl_b32 s34, s31, 8")
    d = acc0
    for i in range(8):
        a(f"ds_read_b128 {vr(d+4*i,4)}, v{vz} offset:{i*8192}")
    a("s_waitcnt lgkmcnt(0)")
    for i in range(8):
        a(f"s_add_u32 s35, s34, {i*32*7168}")
        a(f"buffer_store_dwordx4 {vr(d+4*i,4)}, v{vx}, s[20:23], s35 offen")
    a("s_waitcnt vmcnt(0)")
    a.label("L_ffn1_done")
    a("s_endpgm")
    return a.text(), kernel_desc(name, max(g.vn+8, 0), 96)
```

```python
from asmlib import *
from gemmlib import *
from k_ln import *

def gen_fin():
    a = Asm()
    name = "fin_kernel"
    a.raw(kernel_header(name))
    a("s_cmp_ge_u32 s2, 256")
    a("s_cbranch_scc1 L_fin_done")
    a("s_load_dwordx2 s[4:5], s[0:1], 40")
    a("s_load_dwordx2 s[6:7], s[0:1], 48")
    a("s_load_dwordx2 s[28:29], s[0:1], 120")
    a("s_load_dwordx2 s[44:45], s[0:1], 96")
    a("s_waitcnt lgkmcnt(0)")
    make_srd(a, 12, 4, 1024*2048)
    make_srd(a, 16, 6, 1024*2048)
    make_srd(a, 48, 44, 3584*2048)
    a(f"s_add_u32 s36, s28, {WS_HT}")
    a("s_addc_u32 s37, s29, 0")
    make_srd(a, 8, 36, 2048*2048*2)
    a(f"s_add_u32 s36, s28, {WS_HM}")
    a("s_addc_u32 s37, s29, 0")
    make_srd(a, 52, 36, 2048*7168)
    a("v_lshrrev_b32 v1, 6, v0")
    a("s_nop 0")
    a("v_readfirstlane_b32 s3, v1")
    a("v_and_b32 v1, 63, v0")
    a("s_lshl_b32 s4, s3, 10")
    a("s_and_b32 s30, s2, 15")
    a("s_lshr_b32 s31, s2, 4")
    a("s_lshl_b32 s24, s30, 8")
    a("s_mul_i32 s25, s31, 64*2048")
    a("s_mov_b32 s26, s25")
    a("s_mul_i32 s27, s30, 128*7168")
    a("s_lshl_b32 s38, s31, 7")
    a("s_and_b32 s32, s3, 1")
    a("s_lshl_b32 s32, s32, 6")
    a("s_lshr_b32 s33, s3, 1")
    a("s_lshl_b32 s33, s33, 5")
    g = Gemm(a, 4, 4, 24576, 8)
    H  = Opnd('H', 'KN', 128, 4096, 8, 0)
    Cr = Opnd('R', 'MK', 64, 2048, 12, 16384)
    Ci = Opnd('I', 'MK', 64, 2048, 16, 16384)
    M  = Opnd('M', 'MK', 128, 7168, 52, 0)
    W  = Opnd('W', 'KN', 64, 2048, 48, 16384)
    tmp = (2, 3, 4)
    for op in (H, Cr, M, W):
        g.setup_dma(op, 1, 3, tmp)
    Ci.vdma = Cr.vdma
    g.setup_read(H, 1, 32, 2, tmp)
    g.setup_read(Cr, 1, 33, 1, tmp)
    Ci.vrd = Cr.vrd; Ci.ntiles = 1
    g.setup_read(M, 1, 32, 2, tmp)
    g.setup_read(W, 1, 33, 1, tmp)
    acc0 = g.valloc(64, 4)
    accY = lambda pi, mt, nt: acc0 + mt*16
    accD = lambda pi, mt, nt: acc0 + 32 + mt*16
    for i in range(64):
        a(f"v_mov_b32 v{acc0+i}, 0")
    s1 = Seg(H, [Cr], 16, accY, {'H': 64*4096, 'R': 128})
    s2 = Seg(H, [Ci], 16, accY, {'H': 64*4096, 'I': 128})
    s3 = Seg(M, [W], 56, accD, {'M': 128, 'W': 64*2048})
    kloop(g, [s1, s2, s3], 2, {'H': 24, 'R': 25, 'I': 26, 'M': 27, 'W': 38}, 4)
    a("s_load_dwordx2 s[4:5], s[0:1], 0")
    a("s_load_dwordx2 s[6:7], s[0:1], 64")
    a("s_load_dwordx2 s[40:41], s[0:1], 104")
    a("s_waitcnt lgkmcnt(0)")
    make_srd(a, 12, 4, 2048*2048)
    make_srd(a, 16, 6, 2048)
    make_srd(a, 20, 40, 2048*1024*4)
    make_srd(a, 8, 28, 2048*2048)
    t = g.vn
    vd = t; vadr = t+1; vds = t+2; X0 = t+4; N0 = t+20; T0 = t+36
    a(f"v_and_b32 v{vd}, 31, v1")
    a(f"v_add_u32 v{vd}, s33, v{vd}")
    a("s_lshl_b32 s34, s31, 6")
    a(f"v_add_u32 v{vd}, s34, v{vd}")
    a(f"v_lshlrev_b32 v{vadr}, 1, v{vd}")
    a(f"buffer_load_ushort v{vds}, v{vadr}, s[16:19], 0 offen")
    a(f"v_lshrrev_b32 v{vadr}, 5, v1")
    a(f"v_lshlrev_b32 v{vadr}, 2, v{vadr}")
    a(f"v_add_u32 v{vadr}, s32, v{vadr}")
    a("s_lshl_b32 s34, s30, 7")
    a(f"v_add_u32 v{vadr}, s34, v{vadr}")
    a(f"v_lshl_add_u32 v{vadr}, v{vadr}, 10, v{vd}")
    a(f"v_lshlrev_b32 v{vadr}, 1, v{vadr}")
    a("s_nop 15")
    for mt in range(2):
        for r in range(16):
            row = mt*32 + 8*(r//4) + (r % 4)
            a(f"s_mov_b32 s35, {row*2048}")
            a(f"buffer_load_ushort v{X0+r}, v{vadr}, s[12:15], s35 offen")
            a(f"buffer_load_ushort v{N0+r}, v{vadr}, s[8:11], s35 offen")
        a("s_waitcnt vmcnt(0)")
        if mt == 0:
            a(f"v_lshlrev_b32 v{vds}, 16, v{vds}")
        for r in range(16):
            row = mt*32 + 8*(r//4) + (r % 4)
            y = accY(0, mt, 0)+r; dn = accD(0, mt, 0)+r
            a(f"v_lshlrev_b32 v{N0+r}, 16, v{N0+r}")
            a(f"v_mul_f32 v{N0+r}, v{N0+r}, v{vds}")
            a(f"v_cvt_pk_bf16_f32 v{N0+r}, v{N0+r}, v{dn}")
            a(f"v_and_b32 v{T0}, 0xffff0000, v{N0+r}")
            a(f"v_lshlrev_b32 v{N0+r}, 16, v{N0+r}")
            a(f"v_fma_f32 v{N0+r}, 2.0, v{y}, v{N0+r}")
            a(f"v_mul_f32 v{T0+1}, 0xbfb8aa3b, v{T0}")
            a(f"v_exp_f32 v{T0+1}, v{T0+1}")
            a("s_nop 0")
            a(f"v_add_f32 v{T0+1}, 1.0, v{T0+1}")
            a(f"v_rcp_f32 v{T0+1}, v{T0+1}")
            a("s_nop 0")
            a(f"v_mul_f32 v{T0+1}, v{T0+1}, v{T0}")
            a(f"v_cvt_pk_bf16_f32 v{T0+1}, v{T0+1}, v{T0+1}")
            a(f"v_lshlrev_b32 v{T0+1}, 16, v{T0+1}")
            a(f"v_lshlrev_b32 v{X0+r}, 16, v{X0+r}")
            a(f"v_fma_f32 v{X0+r}, v{N0+r}, v{T0+1}, v{X0+r}")
        if mt == 0:
            a(f"v_lshlrev_b32 v{T0+2}, 1, v{vadr}")
        for r in range(16):
            row = mt*32 + 8*(r//4) + (r % 4)
            a(f"s_mov_b32 s35, {row*4096}")
            a(f"buffer_store_dword v{X0+r}, v{T0+2}, s[20:23], s35 offen")
        a("s_waitcnt vmcnt(0)")
    a.label("L_fin_done")
    a("s_endpgm")
    return a.text(), kernel_desc(name, T0+8, 96)
```

```python
from asmlib import *

WS_XN  = 0
WS_PAR = 4*1024*1024
WS_BU  = 8*1024*1024
WS_HT  = 32*1024*1024
WS_HM  = 48*1024*1024

def wave_sum(a, v, vt, sa, sb):
    for off in (0x041F, 0x081F, 0x101F, 0x201F, 0x401F):
        a(f"ds_swizzle_b32 v{vt}, v{v} offset:0x{off:04X}")
        a("s_waitcnt lgkmcnt(0)")
        a(f"v_add_f32 v{v}, v{v}, v{vt}")
    a("s_nop 0")
    a(f"v_readlane_b32 s{sa}, v{v}, 0")
    a(f"v_readlane_b32 s{sb}, v{v}, 32")
    a("s_nop 1")
    a(f"v_mov_b32 v{v}, s{sa}")
    a(f"v_add_f32 v{v}, s{sb}, v{v}")

def gen_ln():
    a = Asm()
    name = "ln_kernel"
    a.raw(kernel_header(name))
    a("s_cmp_ge_u32 s2, 512")
    a("s_cbranch_scc1 L_ln_done")
    a("s_load_dwordx2 s[4:5], s[0:1], 0")
    a("s_load_dwordx2 s[6:7], s[0:1], 120")
    a("s_waitcnt lgkmcnt(0)")
    make_srd(a, 8, 4, 2048*2048)
    make_srd(a, 12, 6, 2048*2048)
    a("v_and_b32 v1, 63, v0")
    a("v_lshrrev_b32 v2, 6, v0")
    a("s_lshl_b32 s3, s2, 2")
    a("v_add_u32 v2, s3, v2")
    a("v_lshlrev_b32 v2, 11, v2")
    a("v_lshl_add_u32 v2, v1, 5, v2")
    a("buffer_load_dwordx4 v[4:7], v2, s[8:11], 0 offen")
    a("buffer_load_dwordx4 v[8:11], v2, s[8:11], 0 offen offset:16")
    a("s_waitcnt vmcnt(0)")
    for i in range(8):
        a(f"v_lshlrev_b32 v{16+2*i}, 16, v{4+i}")
        a(f"v_and_b32 v{17+2*i}, 0xffff0000, v{4+i}")
    a("v_add_f32 v32, v16, v17")
    for i in range(2, 16):
        a(f"v_add_f32 v32, v32, v{16+i}")
    wave_sum(a, 32, 33, 20, 21)
    a("v_mul_f32 v32, 0x3a800000, v32")
    a("v_sub_f32 v34, v16, v32")
    a("v_mul_f32 v35, v34, v34")
    for i in range(1, 16):
        a(f"v_sub_f32 v34, v{16+i}, v32")
        a("v_fmac_f32 v35, v34, v34")
    wave_sum(a, 35, 33, 20, 21)
    a("v_mul_f32 v35, 0x3a800000, v35")
    a("v_cvt_pk_bf16_f32 v36, v32, v35")
    a("v_lshlrev_b32 v32, 16, v36")
    a("v_and_b32 v35, 0xffff0000, v36")
    a("v_add_f32 v35, 0x3727c5ac, v35")
    a("v_cvt_pk_bf16_f32 v36, v35, v35")
    a("v_lshlrev_b32 v35, 16, v36")
    a("v_sqrt_f32 v35, v35")
    a("s_nop 0")
    a("v_cvt_pk_bf16_f32 v36, v35, v35")
    a("v_lshlrev_b32 v35, 16, v36")
    a("v_rcp_f32 v37, v35")
    a("s_nop 0")
    for i in range(16):
        r = 16+i
        a(f"v_sub_f32 v{r}, v{r}, v32")
        a(f"v_cvt_pk_bf16_f32 v{r}, v{r}, v{r}")
        a(f"v_lshlrev_b32 v{r}, 16, v{r}")
        a(f"v_mul_f32 v38, v{r}, v37")
        a(f"v_fma_f32 v39, -v38, v35, v{r}")
        a(f"v_fma_f32 v{r}, v39, v37, v38")
    for i in range(8):
        a(f"v_cvt_pk_bf16_f32 v{4+i}, v{16+2*i}, v{17+2*i}")
    a("buffer_store_dwordx4 v[4:7], v2, s[12:15], 0 offen")
    a("buffer_store_dwordx4 v[8:11], v2, s[12:15], 0 offen offset:16")
    a("s_cmp_ge_u32 s2, 4")
    a("s_cbranch_scc1 L_ln_end")
    a("s_load_dwordx2 s[16:17], s[0:1], 8")
    a("s_load_dwordx2 s[18:19], s[0:1], 16")
    a("s_load_dwordx2 s[20:21], s[0:1], 56")
    a("s_waitcnt lgkmcnt(0)")
    make_srd(a, 24, 16, 2048)
    make_srd(a, 28, 18, 2048)
    make_srd(a, 32, 20, 2048)
    a("s_lshl_b32 s3, s2, 8")
    a("v_add_u32 v1, s3, v0")
    a("v_lshlrev_b32 v2, 1, v1")
    a("buffer_load_ushort v4, v2, s[24:27], 0 offen")
    a("buffer_load_ushort v5, v2, s[28:31], 0 offen")
    a("buffer_load_ushort v6, v2, s[32:35], 0 offen")
    a("s_waitcnt vmcnt(0)")
    a("v_lshlrev_b32 v4, 16, v4")
    a("v_lshlrev_b32 v5, 16, v5")
    a("v_lshlrev_b32 v6, 16, v6")
    a("v_mul_f32 v6, 0x3fb8aa3b, v6")
    a("v_exp_f32 v6, v6")
    a("s_nop 0")
    a("v_cvt_pk_bf16_f32 v6, v6, v6")
    a("v_lshlrev_b32 v6, 16, v6")
    a("v_mul_f32 v7, v6, v4")
    a("v_mul_f32 v8, v6, v5")
    a("v_mul_f32 v9, 0x3fb8aa3b, v7")
    a("v_exp_f32 v9, v9")
    a("v_mul_f32 v10, 0x3e22f983, v8")
    a("v_cos_f32 v11, v10")
    a("v_sin_f32 v12, v10")
    a("s_nop 0")
    a("v_mul_f32 v16, v9, v11")
    a("v_mul_f32 v17, v9, v12")
    a("v_add_f32 v13, -1.0, v16")
    a("v_mul_f32 v14, v4, v4")
    a("v_fmac_f32 v14, v5, v5")
    a("v_rcp_f32 v14, v14")
    a("v_mul_f32 v18, v13, v4")
    a("v_fmac_f32 v18, v17, v5")
    a("v_mul_f32 v19, v17, v4")
    a("v_fma_f32 v19, -v13, v5, v19")
    a("v_mul_f32 v18, v18, v14")
    a("v_mul_f32 v19, v19, v14")
    a(f"s_add_u32 s6, s6, {WS_PAR}")
    a("s_addc_u32 s7, s7, 0")
    make_srd(a, 12, 6, 16384)
    a("v_lshlrev_b32 v2, 4, v1")
    a("buffer_store_dwordx4 v[16:19], v2, s[12:15], 0 offen")
    a.label("L_ln_end")
    a("s_waitcnt vmcnt(0)")
    a.label("L_ln_done")
    a("s_endpgm")
    return a.text(), kernel_desc(name, 40, 40)
```

```python
from asmlib import *
from k_ln import *

def cmul(a, dr, di, ar, ai, br, bi, t):
    a(f"v_mul_f32 v{t}, v{ar}, v{br}")
    a(f"v_fma_f32 v{t}, -v{ai}, v{bi}, v{t}")
    a(f"v_mul_f32 v{di}, v{ar}, v{bi}") if di != bi else None
    if di == bi:
        a(f"v_mul_f32 v{t+1}, v{ar}, v{bi}")
        a(f"v_fma_f32 v{di}, v{ai}, v{br}, v{t+1}")
    else:
        a(f"v_fma_f32 v{di}, v{ai}, v{br}, v{di}")
    a(f"v_mov_b32 v{dr}, v{t}")

def gen_scan():
    a = Asm()
    name = "scan_kernel"
    a.raw(kernel_header(name))
    a("s_cmp_ge_u32 s2, 128")
    a("s_cbranch_scc1 L_scan_done")
    a("s_load_dwordx2 s[4:5], s[0:1], 120")
    a("s_waitcnt lgkmcnt(0)")
    a(f"s_add_u32 s6, s4, {WS_PAR}")
    a("s_addc_u32 s7, s5, 0")
    make_srd(a, 8, 6, 16384)
    a(f"s_add_u32 s6, s4, {WS_BU}")
    a("s_addc_u32 s7, s5, 0")
    make_srd(a, 12, 6, 2048*1024*8)
    a(f"s_add_u32 s6, s4, {WS_HT}")
    a("s_addc_u32 s7, s5, 0")
    make_srd(a, 16, 6, 2048*2048*2)
    a("v_and_b32 v1, 7, v0")
    a("v_lshrrev_b32 v2, 3, v0")
    a("s_lshl_b32 s3, s2, 3")
    a("v_add_u32 v3, s3, v1")
    a("v_lshlrev_b32 v4, 4, v3")
    a("buffer_load_dwordx2 v[6:7], v4, s[8:11], 0 offen")
    a("v_lshlrev_b32 v4, 15, v2")
    a("v_add_u32 v4, v4, v3")
    a("v_lshlrev_b32 v4, 3, v4")
    D0 = 16
    for j in range(32):
        a(f"s_mov_b32 s20, {j*8192}")
        a(f"buffer_load_dwordx2 {vr(D0+2*j,2)}, v4, s[12:15], s20 offen")
    a("s_waitcnt vmcnt(0)")
    for j in range(1, 32):
        pr, pi_ = D0+2*j-2, D0+2*j-1
        cr, ci = D0+2*j, D0+2*j+1
        a(f"v_fma_f32 v{cr}, v6, v{pr}, v{cr}")
        a(f"v_fma_f32 v{cr}, -v7, v{pi_}, v{cr}")
        a(f"v_fma_f32 v{ci}, v6, v{pi_}, v{ci}")
        a(f"v_fma_f32 v{ci}, v7, v{pr}, v{ci}")
    a("v_lshlrev_b32 v5, 3, v0")
    a(f"ds_write_b64 v5, {vr(D0+62,2)}")
    a("v_mov_b32 v8, v6")
    a("v_mov_b32 v9, v7")
    for _ in range(5):
        cmul(a, 8, 9, 8, 9, 8, 9, 10)
    a("s_waitcnt lgkmcnt(0)")
    a("s_barrier")
    a("v_cmp_gt_u32 vcc, 8, v0")
    a("s_and_saveexec_b64 s[22:23], vcc")
    a("s_cbranch_execz L_scan_c")
    R0 = 84
    for c in range(64):
        a(f"ds_read_b64 {vr(R0+2*c,2)}, v5 offset:{c*64}")
    a("v_mov_b32 v12, 0")
    a("v_mov_b32 v13, 0")
    a("s_waitcnt lgkmcnt(0)")
    for c in range(64):
        a(f"ds_write_b64 v5, v[12:13] offset:{4096 + c*64}")
        cmul(a, 12, 13, 8, 9, 12, 13, 10)
        a(f"v_add_f32 v12, v12, v{R0+2*c}")
        a(f"v_add_f32 v13, v13, v{R0+2*c+1}")
    a("s_waitcnt lgkmcnt(0)")
    a.label("L_scan_c")
    a("s_or_b64 exec, exec, s[22:23]")
    a("s_barrier")
    a("ds_read_b64 v[12:13], v5 offset:4096")
    a("s_waitcnt lgkmcnt(0)")
    for j in range(32):
        cmul(a, 12, 13, 6, 7, 12, 13, 10)
        a(f"v_add_f32 v{D0+2*j}, v{D0+2*j}, v12")
        a(f"v_add_f32 v{D0+2*j+1}, v{D0+2*j+1}, v13")
    P0 = 84
    for j in range(16):
        a(f"v_cvt_pk_bf16_f32 v{P0+j}, v{D0+4*j}, v{D0+4*j+2}")
        a(f"v_cvt_pk_bf16_f32 v{P0+16+j}, -v{D0+4*j+1}, -v{D0+4*j+3}")
    a("v_lshlrev_b32 v4, 12, v3")
    a("v_lshl_add_u32 v4, v2, 6, v4")
    for q in range(4):
        a(f"buffer_store_dwordx4 {vr(P0+4*q,4)}, v4, s[16:19], 0 offen offset:{16*q}")
    a(f"s_mov_b32 s20, {1024*4096}")
    for q in range(4):
        a(f"buffer_store_dwordx4 {vr(P0+16+4*q,4)}, v4, s[16:19], s20 offen offset:{16*q}")
    a("s_waitcnt vmcnt(0)")
    a.label("L_scan_done")
    a("s_endpgm")
    return a.text(), kernel_desc(name, 216, 40)
```

```python
import sys
from asmlib import *
import k_ln, k_ffn1, k_bu, k_scan, k_fin
HEADER = open('recurrent_scan__ssm_conv_s5__geglu_ffn__prompt.s.ref').read().split('; Override launch')[0]
def build(parts, launches, path):
    txt = HEADER
    for l in launches: txt += l + "\n"
    txt += '.amdgcn_target "amdgcn-amd-amdhsa--gfx950"\n.text\n'
    for code, desc in parts: txt += code
    txt += '.section .rodata,"a"\n'
    for code, desc in parts: txt += ".p2align 6\n" + desc
    open(path, 'w').write(txt)
if __name__ == "__main__":
    parts = [k_ln.gen_ln(), k_bu.gen_bu(), k_scan.gen_scan(), k_ffn1.gen_ffn1(), k_fin.gen_fin()]
    launches = ["; @launch kernel=ln_kernel grid=(512,1,1) block=(256,1,1) lds=0",
                "; @launch kernel=bu_kernel grid=(256,1,1) block=(256,1,1) lds=131072",
                "; @launch kernel=scan_kernel grid=(128,1,1) block=(512,1,1) lds=8192",
                "; @launch kernel=ffn1_kernel grid=(224,1,1) block=(512,1,1) lds=131072",
                "; @launch kernel=fin_kernel grid=(256,1,1) block=(256,1,1) lds=98304"]
    out = sys.argv[1] if len(sys.argv) > 1 else 't_all.s'
    build(parts, launches, out)
```

```python
from asmlib import *
from gemmlib import *
from k_ln import *

def gen_bu():
    a = Asm()
    name = "bu_kernel"
    a.raw(kernel_header(name))
    a("s_cmp_ge_u32 s2, 256")
    a("s_cbranch_scc1 L_bu_done")
    a("s_load_dwordx2 s[4:5], s[0:1], 24")
    a("s_load_dwordx2 s[6:7], s[0:1], 32")
    a("s_load_dwordx2 s[28:29], s[0:1], 120")
    a("s_waitcnt lgkmcnt(0)")
    make_srd(a, 8, 28, 2048*2048)
    make_srd(a, 12, 4, 1024*2048)
    make_srd(a, 16, 6, 1024*2048)
    a(f"s_add_u32 s36, s28, {WS_PAR}")
    a("s_addc_u32 s37, s29, 0")
    make_srd(a, 40, 36, 16384)
    a(f"s_add_u32 s28, s28, {WS_BU}")
    a("s_addc_u32 s29, s29, 0")
    make_srd(a, 20, 28, 2048*1024*8)
    a("v_lshrrev_b32 v1, 6, v0")
    a("s_nop 0")
    a("v_readfirstlane_b32 s3, v1")
    a("v_and_b32 v1, 63, v0")
    a("s_lshl_b32 s4, s3, 10")
    a("s_and_b32 s30, s2, 15")
    a("s_lshr_b32 s31, s2, 4")
    a("s_mul_i32 s24, s30, 128*2048")
    a("s_mul_i32 s25, s31, 64*2048")
    a("s_mov_b32 s26, s25")
    a("s_and_b32 s32, s3, 1")
    a("s_lshl_b32 s32, s32, 6")
    a("s_lshr_b32 s33, s3, 1")
    a("s_lshl_b32 s33, s33, 5")
    g = Gemm(a, 4, 4, 32768, 8)
    A  = Opnd('A', 'MK', 128, 2048, 8, 0)
    Br = Opnd('R', 'MK', 64, 2048, 12, 16384)
    Bi = Opnd('I', 'MK', 64, 2048, 16, 24576)
    tmp = (2, 3, 4)
    for op in (A, Br, Bi):
        g.setup_dma(op, 1, 3, tmp)
    g.setup_read(A, 1, 32, 2, tmp)
    g.setup_read(Br, 1, 33, 1, tmp)
    g.setup_read(Bi, 1, 33, 1, tmp)
    acc0 = g.valloc(64, 4)
    def acc(pi, mt, nt): return acc0 + (pi*2 + mt)*16
    for i in range(64):
        a(f"v_mov_b32 v{acc0+i}, 0")
    seg = Seg(A, [Br, Bi], 16, acc, {'A': 128, 'R': 128, 'I': 128})
    kloop(g, [seg], 2, {'A': 24, 'R': 25, 'I': 26}, 4)
    t = g.vn
    vp = t; vadr = t+1; vc = t+2
    vT = t+6
    a(f"v_and_b32 v{vp}, 31, v1")
    a(f"v_add_u32 v{vp}, s33, v{vp}")
    a("s_lshl_b32 s34, s31, 6")
    a(f"v_add_u32 v{vp}, s34, v{vp}")
    a(f"v_lshlrev_b32 v{vadr}, 4, v{vp}")
    a(f"buffer_load_dwordx4 {vr(vc,4)}, v{vadr}, s[40:43], 0 offen")
    a(f"v_lshrrev_b32 v{vadr}, 5, v1")
    a(f"v_lshlrev_b32 v{vadr}, 2, v{vadr}")
    a(f"v_add_u32 v{vadr}, s32, v{vadr}")
    a("s_lshl_b32 s34, s30, 7")
    a(f"v_add_u32 v{vadr}, s34, v{vadr}")
    a(f"v_lshrrev_b32 v{vT}, 3, v{vp}")
    a(f"v_lshl_add_u32 v{vadr}, v{vT}, 11, v{vadr}")
    a(f"v_lshlrev_b32 v{vadr}, 6, v{vadr}")
    a(f"v_and_b32 v{vT}, 7, v{vp}")
    a(f"v_lshl_add_u32 v{vadr}, v{vT}, 3, v{vadr}")
    a("s_nop 15")
    a("s_waitcnt vmcnt(0)")
    cr, ci = vc+2, vc+3
    for mt in range(2):
        for r in range(16):
            ur = acc(0, mt, 0)+r; ui = acc(1, mt, 0)+r
            row = mt*32 + 8*(r//4) + (r % 4)
            a(f"v_mul_f32 v{vT}, v{cr}, v{ur}")
            a(f"v_fma_f32 v{vT}, -v{ci}, v{ui}, v{vT}")
            a(f"v_mul_f32 v{vT+1}, v{cr}, v{ui}")
            a(f"v_fma_f32 v{vT+1}, v{ci}, v{ur}, v{vT+1}")
            a(f"s_mov_b32 s35, {row*64}")
            a(f"buffer_store_dwordx2 {vr(vT,2)}, v{vadr}, s[20:23], s35 offen")
            vT = t+6 + ((vT - (t+6) + 2) % 8)
    a("s_waitcnt vmcnt(0)")
    a.label("L_bu_done")
    a("s_endpgm")
    return a.text(), kernel_desc(name, t+16, 96)
```

```python
from asmlib import *
from k_ln import *

def cmul(a, dr, di, ar, ai, br, bi, t):
    a(f"v_mul_f32 v{t}, v{ar}, v{br}")
    a(f"v_fma_f32 v{t}, -v{ai}, v{bi}, v{t}")
    a(f"v_mul_f32 v{di}, v{ar}, v{bi}") if di != bi else None
    if di == bi:
        a(f"v_mul_f32 v{t+1}, v{ar}, v{bi}")
        a(f"v_fma_f32 v{di}, v{ai}, v{br}, v{t+1}")
    else:
        a(f"v_fma_f32 v{di}, v{ai}, v{br}, v{di}")
    a(f"v_mov_b32 v{dr}, v{t}")

def gen_scan():
    a = Asm()
    name = "scan_kernel"
    a.raw(kernel_header(name))
    a("s_cmp_ge_u32 s2, 128")
    a("s_cbranch_scc1 L_scan_done")
    a("s_load_dwordx2 s[4:5], s[0:1], 120")
    a("s_waitcnt lgkmcnt(0)")
    a(f"s_add_u32 s6, s4, {WS_PAR}")
    a("s_addc_u32 s7, s5, 0")
    make_srd(a, 8, 6, 16384)
    a(f"s_add_u32 s6, s4, {WS_BU}")
    a("s_addc_u32 s7, s5, 0")
    make_srd(a, 12, 6, 2048*1024*8)
    a(f"s_add_u32 s6, s4, {WS_HT}")
    a("s_addc_u32 s7, s5, 0")
    make_srd(a, 16, 6, 2048*2048*2)
    a("v_and_b32 v1, 7, v0")
    a("v_lshrrev_b32 v2, 3, v0")
    a("s_lshl_b32 s3, s2, 3")
    a("v_add_u32 v3, s3, v1")
    a("v_lshlrev_b32 v4, 4, v3")
    a("buffer_load_dwordx2 v[6:7], v4, s[8:11], 0 offen")
    a("v_lshlrev_b32 v4, 11, v2")
    a("v_lshl_add_u32 v4, v1, 3, v4")
    a("s_lshl_b32 s21, s2, 17")
    a("v_add_u32 v4, s21, v4")
    D0 = 16
    for j in range(32):
        a(f"buffer_load_dwordx2 {vr(D0+2*j,2)}, v4, s[12:15], 0 offen offset:{j*64}")
    a("s_waitcnt vmcnt(0)")
    for j in range(1, 32):
        pr, pi_ = D0+2*j-2, D0+2*j-1
        cr, ci = D0+2*j, D0+2*j+1
        a(f"v_fma_f32 v{cr}, v6, v{pr}, v{cr}")
        a(f"v_fma_f32 v{cr}, -v7, v{pi_}, v{cr}")
        a(f"v_fma_f32 v{ci}, v6, v{pi_}, v{ci}")
        a(f"v_fma_f32 v{ci}, v7, v{pr}, v{ci}")
    a("v_lshlrev_b32 v5, 3, v0")
    a(f"ds_write_b64 v5, {vr(D0+62,2)}")
    a("v_mov_b32 v8, v6")
    a("v_mov_b32 v9, v7")
    for _ in range(5):
        cmul(a, 8, 9, 8, 9, 8, 9, 10)
    a("s_waitcnt lgkmcnt(0)")
    a("s_barrier")
    a("v_cmp_gt_u32 vcc, 8, v0")
    a("s_and_saveexec_b64 s[22:23], vcc")
    a("s_cbranch_execz L_scan_c")
    R0 = 84
    for c in range(64):
        a(f"ds_read_b64 {vr(R0+2*c,2)}, v5 offset:{c*64}")
    a("v_mov_b32 v12, 0")
    a("v_mov_b32 v13, 0")
    a("s_waitcnt lgkmcnt(0)")
    for c in range(64):
        a(f"ds_write_b64 v5, v[12:13] offset:{4096 + c*64}")
        cmul(a, 12, 13, 8, 9, 12, 13, 10)
        a(f"v_add_f32 v12, v12, v{R0+2*c}")
        a(f"v_add_f32 v13, v13, v{R0+2*c+1}")
    a("s_waitcnt lgkmcnt(0)")
    a.label("L_scan_c")
    a("s_or_b64 exec, exec, s[22:23]")
    a("s_barrier")
    a("ds_read_b64 v[12:13], v5 offset:4096")
    a("s_waitcnt lgkmcnt(0)")
    for j in range(32):
        cmul(a, 12, 13, 6, 7, 12, 13, 10)
        a(f"v_add_f32 v{D0+2*j}, v{D0+2*j}, v12")
        a(f"v_add_f32 v{D0+2*j+1}, v{D0+2*j+1}, v13")
    P0 = 84
    for j in range(16):
        a(f"v_cvt_pk_bf16_f32 v{P0+j}, v{D0+4*j}, v{D0+4*j+2}")
        a(f"v_cvt_pk_bf16_f32 v{P0+16+j}, -v{D0+4*j+1}, -v{D0+4*j+3}")
    a("v_lshlrev_b32 v4, 12, v3")
    a("v_lshl_add_u32 v4, v2, 6, v4")
    for q in range(4):
        a(f"buffer_store_dwordx4 {vr(P0+4*q,4)}, v4, s[16:19], 0 offen offset:{16*q}")
    a(f"s_mov_b32 s20, {1024*4096}")
    for q in range(4):
        a(f"buffer_store_dwordx4 {vr(P0+16+4*q,4)}, v4, s[16:19], s20 offen offset:{16*q}")
    a("s_waitcnt vmcnt(0)")
    a.label("L_scan_done")
    a("s_endpgm")
    return a.text(), kernel_desc(name, 216, 40)
```
